```python
import torch

def _softmax(x, axis=-1):
    return torch.softmax(x, dim=axis)
def _gelu(x):
    return torch.nn.functional.gelu(x, approximate="tanh")
def _silu(x):
    return torch.nn.functional.silu(x)
def _sigmoid(x):
    return torch.sigmoid(x)
def _layernorm(x, axis=-1, eps=1e-5):
    m = x.mean(dim=axis, keepdim=True)
    v = x.var(dim=axis, keepdim=True, unbiased=False)
    return (x - m) / torch.sqrt(v + eps)
def _scatter_add(tgt, idx, src, axis=0):
    return tgt.clone().index_add_(axis, idx, src)
def _segment_sum(src, seg, n):
    out = torch.zeros((n,) + src.shape[1:], dtype=src.dtype)
    return out.index_add_(0, seg, src)
def _pad(x, pw):
    flat = tuple(v for pair in reversed(pw) for v in pair)
    return torch.nn.functional.pad(x, flat)

kernel_name = 'concat_heads__gqa_block_cached__mha_block_cached__near_ridge'

def setup_inputs():

    _w = (lambda a: (lambda t: t.to(torch.bfloat16) if t.is_floating_point() else t)(torch.as_tensor(a)))
    def _A_setup():
        B, Sq, D = 16, 128, 640
        Hq, Hkv, Sk, Dh = 32, 32, 512, 192
        assert Hq % Hkv == 0, (Hq, Hkv)
        return {
            "x": _w((lambda *s: torch.randn(*s, dtype=torch.bfloat16) * 0.8)(B, Sq, D)),
            "k_cache": _w((lambda *s: torch.randn(*s, dtype=torch.bfloat16) * 0.8)(B, Hkv, Sk, Dh)),
            "v_cache": _w((lambda *s: torch.randn(*s, dtype=torch.bfloat16) * 0.05)(B, Hkv, Sk, Dh)),
            "wq": _w((lambda *s: torch.randn(*s, dtype=torch.bfloat16) * 0.8)(D, Hq * Dh) * (D ** -0.5)),
            "wo": _w((lambda *s: torch.randn(*s, dtype=torch.bfloat16) * 0.05)(Hq * Dh, D) * ((Hq * Dh) ** -0.5)),
        }
    _A_in = _A_setup()

    def _B_setup():
        B, Sq, D = 16, 128, 640
        H, Sk, Dh = 32, 512, 192
        return {
            "x": _w((lambda *s: torch.randn(*s, dtype=torch.bfloat16) * 0.8)(B, Sq, D)),
            "k_cache": _w((lambda *s: torch.randn(*s, dtype=torch.bfloat16) * 0.8)(B, H, Sk, Dh)),
            "v_cache": _w((lambda *s: torch.randn(*s, dtype=torch.bfloat16) * 0.05)(B, H, Sk, Dh)),
            "wq": _w((lambda *s: torch.randn(*s, dtype=torch.bfloat16) * 0.8)(D, H * Dh) * (D ** -0.5)),
            "wo": _w((lambda *s: torch.randn(*s, dtype=torch.bfloat16) * 0.05)(H * Dh, D) * ((H * Dh) ** -0.5)),
        }
    _B_in = _B_setup()

    return {
        "A_x": _A_in["x"],
        "A_k_cache": _A_in["k_cache"],
        "A_v_cache": _A_in["v_cache"],
        "A_wq": _A_in["wq"],
        "A_wo": _A_in["wo"],
        "B_x": _B_in["x"],
        "B_k_cache": _B_in["k_cache"],
        "B_v_cache": _B_in["v_cache"],
        "B_wq": _B_in["wq"],
        "B_wo": _B_in["wo"],
    }

def reference(A_x, A_k_cache, A_v_cache, A_wq, A_wo, B_x, B_k_cache, B_v_cache, B_wq, B_wo):
    def _A_ref(x, k_cache, v_cache, wq, wo):
        B, Sq, D = x.shape
        Hq, Dh = 32, 192
        Hkv = k_cache.shape[1]
        rep = Hq // Hkv
        q = (lambda x, *d: x.permute(*d))((x @ wq).reshape(B, Sq, Hq, Dh), 0, 2, 1, 3)
        k = (lambda x, n, axis: torch.repeat_interleave(x, n, dim=axis))(k_cache, rep, axis=1)
        v = (lambda x, n, axis: torch.repeat_interleave(x, n, dim=axis))(v_cache, rep, axis=1)
        scores = torch.einsum("bhqd,bhkd->bhqk", q, k) * (Dh ** -0.5)
        p = _softmax(scores, axis=-1)
        o = torch.einsum("bhqk,bhkd->bhqd", p, v)
        return (lambda x, *d: x.permute(*d))(o, 0, 2, 1, 3).reshape(B, Sq, Hq * Dh) @ wo

    def _B_ref(x, k_cache, v_cache, wq, wo):
        B, Sq, D = x.shape
        H, Dh = 32, 192
        q = (lambda x, *d: x.permute(*d))((x @ wq).reshape(B, Sq, H, Dh), 0, 2, 1, 3)
        scores = torch.einsum("bhqd,bhkd->bhqk", q, k_cache) * (Dh ** -0.5)
        p = _softmax(scores, axis=-1)
        o = torch.einsum("bhqk,bhkd->bhqd", p, v_cache)
        return (lambda x, *d: x.permute(*d))(o, 0, 2, 1, 3).reshape(B, Sq, H * Dh) @ wo

    a = _A_ref(A_x, A_k_cache, A_v_cache, A_wq, A_wo)
    b = _B_ref(B_x, B_k_cache, B_v_cache, B_wq, B_wo)
    return torch.concatenate([a, b], axis=-1)
```

```python
def V(n, cnt=1):
    return list(range(n, n + cnt))

def A(n, cnt=1):
    return list(range(256 + n, 256 + n + cnt))

def rname(r, cnt=1):
    p = 'v' if r < 256 else 'a'
    n = r if r < 256 else r - 256
    if cnt == 1:
        return "%s%d" % (p, n)
    return "%s[%d:%d]" % (p, n, n + cnt - 1)


class I:
    __slots__ = ("text", "kind", "rd", "wr", "cd", "srd", "swr", "cost", "tag", "passes")

    def __init__(self, text, kind, rd=(), wr=(), cd=(), srd=(), swr=(), cost=1.0, tag=None, passes=8):
        self.text = text
        self.kind = kind
        self.rd = tuple(rd)
        self.wr = tuple(wr)
        self.cd = tuple(cd)
        self.srd = tuple(srd)
        self.swr = tuple(swr)
        self.cost = cost
        self.tag = tag
        self.passes = passes

    def __repr__(self):
        return self.text


def mfma32(d, a, b, c):
    ct = "0" if c is None else rname(c, 16)
    return I("v_mfma_f32_32x32x16_bf16 %s, %s, %s, %s" % (rname(d, 16), rname(a, 4), rname(b, 4), ct),
             "mfma", rd=list(range(a, a + 4)) + list(range(b, b + 4)), wr=range(d, d + 16),
             cd=() if c is None else range(c, c + 16), cost=2.0, passes=8)


def valu(text, wr, rd, cost=1.0, srd=(), swr=()):
    return I(text, "valu", rd=rd, wr=wr, cost=cost, srd=srd, swr=swr)


def trans(text, wr, rd):
    return I(text, "trans", rd=rd, wr=wr, cost=2.0)


def salu(text, swr=(), srd=()):
    return I(text, "salu", srd=srd, swr=swr)


def nop(n):
    assert 1 <= n <= 16
    return I("s_nop %d" % (n - 1), "nop", cost=n)


def states(ins):
    if ins.kind == "nop":
        return int(ins.cost)
    if ins.kind in ("label", "raw"):
        return 0
    return 1


VALU_KINDS = ("valu", "trans", "perm")


def required_gap(p, c):
    need = 0
    pk, ck = p.kind, c.kind
    if pk in VALU_KINDS:
        pw = set(p.wr)
        if pw:
            if ck == "mfma" and (pw & (set(c.rd) | set(c.cd))):
                need = max(need, 2)
            if ck == "perm" and (pw & set(c.rd)):
                need = max(need, 2)
            if pk == "trans" and ck in ("valu", "perm", "mfma", "store", "ds", "vmem") and (pw & set(c.rd)):
                need = max(need, 1)
            if c.tag == "readlane" and (pw & set(c.rd)):
                need = max(need, 1)
        ps = set(p.swr)
        if ps:
            if ck in VALU_KINDS and (ps & set(c.srd)):
                need = max(need, 2)
            if ck in ("vmem", "store") and (ps & set(c.srd)):
                need = max(need, 5)
            if ck == "salu" and (ps & set(c.srd)):
                need = max(need, 2)
    if pk == "mfma":
        d = set(p.wr)
        big = {8: 12, 4: 8}[p.passes]
        ovl = {8: 10, 4: 6}[p.passes]
        war = {8: 7, 4: 3}[p.passes]
        if ck == "mfma":
            if d & set(c.rd):
                need = max(need, big)
            if d & set(c.cd):
                if tuple(c.cd) != tuple(p.wr):
                    need = max(need, ovl)
            if d & set(c.wr) and tuple(c.cd) != tuple(p.wr):
                need = max(need, ovl)
        elif ck in VALU_KINDS or ck in ("ds", "vmem", "store"):
            if d & (set(c.rd) | set(c.wr)):
                need = max(need, big)
            if ck in VALU_KINDS and (set(p.cd) & set(c.wr)):
                need = max(need, war)
    if pk == "salu" and "m0" in p.swr and ck in ("vmem",) and "m0" in c.srd:
        need = max(need, 1)
    if pk == "store" and ck in VALU_KINDS + ("ds", "vmem", "mfma"):
        if set(p.rd) & set(c.wr) and p.tag == "wide":
            need = max(need, 2)
    return need


def fix_hazards(ins_list, prefix=(), window=24, verbose=False):
    out = []
    hist = list(prefix)[-window:]
    inserted = 0
    for ins in ins_list:
        if ins.kind not in ("label", "raw"):
            need = 0
            dist = 0
            for p in reversed(hist):
                g = required_gap(p, ins)
                if g > dist:
                    need = max(need, g - dist)
                dist += states(p)
                if dist >= 20:
                    break
            if need > 0:
                n = nop(need)
                out.append(n)
                hist.append(n)
                inserted += need
                if verbose:
                    print("hazard: %d states before %s" % (need, ins.text))
        out.append(ins)
        hist.append(ins)
        if len(hist) > window:
            hist = hist[-window:]
    return out, inserted


class Counter:
    def __init__(self, maxv):
        self.q = []
        self.maxv = maxv

    def issue(self, tag):
        self.q.append(tag)

    def need(self, tags):
        last = -1
        for i, t in enumerate(self.q):
            if t in tags:
                last = i
        if last < 0:
            return None
        n = len(self.q) - 1 - last
        self.q = self.q[last + 1:]
        if n > self.maxv:
            n = self.maxv
            self.q = self.q[len(self.q) - n:] if n else []
        return n
```

```python
import sys, math, struct
from asmlib import *

KNAME = "concat_heads__gqa_block_cached__mha_block_cached__near_ridge"

HEADER = """; Kernarg layout for this problem (104 bytes, ptrs only, base s[0:1]):
"""

def f32bits(x):
    return struct.unpack("<I", struct.pack("<f", x))[0]

VOFF_K, VOFF_V, VOFF_WQ, VOFF_WO, VOFF_X, VOFF_P = 4, 5, 6, 7, 8, 9
AK = 10
AT = 22
AQ = 28
VL, VMX, VT, VR = 34, 35, 36, 37
NEGM = 40
P = 56
S = [64, 80]
ACC = 96
TB = 192
OUTP = 256 + 0
AF = 256 + 160
QB = 256 + 192
OB = QB
XPOOL = [224 + 4 * i for i in range(8)] + [256 + 240 + 4 * i for i in range(4)] + [40 + 4 * i for i in range(6)]

SRD_K, SRD_V, SRD_WQ, SRD_WO, SRD_X, SRD_WS = 8, 12, 16, 20, 24, 28
S_K, S_V, S_WQ, S_WQB, S_WO, S_WOB, S_X, S_LOOP, S_LDSW, S_THR, S_SCALE, S_MASK, S_XB, S_PST, S_TMP = \
    32, 33, 34, 35, 36, 37, 38, 39, 40, 41, 42, 43, 44, 45, 46
S_WAVE = 47

UNIT = 12288
NSLOT = 12
NUNIT = 72
NM = NUNIT * 12


def srd(n):
    return "s[%d:%d]" % (n, n + 3)


def unit_kind(u):
    if u < 20:
        return ('W', u)
    if u < 52:
        a = u - 20
        if a == 0:
            return ('K', 0)
        if a == 31:
            return ('V', 15)
        if a % 2 == 1:
            return ('K', (a + 1) // 2)
        return ('V', (a - 2) // 2)
    return ('O', u - 52)


def unit_of(kind, idx):
    for u in range(NUNIT):
        if unit_kind(u) == (kind, idx):
            return u
    raise KeyError


class Gen:
    def __init__(self, PF=6, NF=8, budget=6.0, xlead=7, dbg=None, nheads=4, thr=8.0, nt_kv=True, stamps=False):
        self.PF, self.NF, self.budget, self.xlead = PF, NF, budget, xlead
        self.dbg = dbg
        self.nheads = nheads
        self.thr = thr
        self.nt_kv = nt_kv
        self.stamps = stamps
        self.rare = []
        self.vm = Counter(63)
        self.lg = Counter(15)

    def dma(self, uabs, p):
        u = uabs % NUNIT
        kind, idx = unit_kind(u)
        slot = u % NSLOT
        out = []
        nt = " nt" if self.nt_kv else ""
        if kind == 'W':
            if idx == 0 and p == 0:
                out.append(salu("s_add_u32 s%d, s%d, 384" % (S_WQB, S_WQB)))
                out.append(salu("s_cmp_eq_u32 s%d, %d" % (S_LOOP, self.nheads - 1)))
                out.append(salu("s_cselect_b32 s%d, 0x40000000, s%d" % (S_WQ, S_WQB)))
            out.append(salu("s_add_u32 m0, s%d, %d" % (S_LDSW, slot * UNIT + 896 * p), swr=("m0",)))
            out.append(I("buffer_load_dwordx4 v%d, %s, s%d offen offset:%d lds" % (VOFF_WQ, srd(SRD_WQ), S_WQ, 128 * p),
                         "vmem", rd=V(VOFF_WQ), srd=("m0",)))
            if p == 2:
                out.append(salu("s_add_u32 s%d, s%d, %d" % (S_WQ, S_WQ, 32 * 12288)))
        elif kind in ('K', 'V'):
            vo, sr, so = (VOFF_K, SRD_K, S_K) if kind == 'K' else (VOFF_V, SRD_V, S_V)
            out.append(salu("s_add_u32 m0, s%d, %d" % (S_LDSW, slot * UNIT + 896 * p), swr=("m0",)))
            out.append(I("buffer_load_dwordx4 v%d, %s, s%d offen offset:%d%s lds" % (vo, srd(sr), so, 128 * p, nt),
                         "vmem", rd=V(vo), srd=("m0",)))
            if p == 2:
                out.append(salu("s_add_u32 s%d, s%d, %d" % (so, so, UNIT)))
        else:
            np_, hf = idx // 2, idx % 2
            out.append(salu("s_add_u32 m0, s%d, %d" % (S_LDSW, slot * UNIT + 1024 * p), swr=("m0",)))
            out.append(salu("s_add_u32 s%d, s%d, %d" % (S_WO, S_WOB, hf * 122880 + np_ * 128 + p * 10240)))
            out.append(I("buffer_load_dwordx4 v%d, %s, s%d offen lds" % (VOFF_WO, srd(SRD_WO), S_WO),
                         "vmem", rd=V(VOFF_WO), srd=("m0",)))
            if idx == 19 and p == 2:
                out.append(salu("s_add_u32 s%d, s%d, %d" % (S_WOB, S_WOB, 245760)))
        self.vm.issue(('u', uabs))
        return out

    def xload(self, it, i):
        out = []
        if i == 0:
            out.append(salu("s_cmp_eq_u32 s%d, %d" % (S_LOOP, self.nheads - 1)))
            out.append(salu("s_cselect_b32 s%d, 0x40000000, s%d" % (S_X, S_XB)))
        r = XPOOL[i % len(XPOOL)]
        out.append(I("buffer_load_dwordx4 %s, v%d, %s, s%d offen offset:%d" % (rname(r, 4), VOFF_X, srd(SRD_X), S_X, 32 * i),
                     "vmem", rd=V(VOFF_X), wr=range(r, r + 4)))
        self.vm.issue(('x', it, i))
        return out

    def frag_reads(self, kabs):
        k = kabs % NM
        u, i = k // 12, k % 12
        kind, idx = unit_kind(u)
        slot = u % NSLOT
        grp, sb = slot // 4, (slot % 4) * UNIT
        fr = AF + 4 * (k % self.NF)
        out = []
        if kind == 'K':
            a = AK + grp * 4 + (i % 4)
            out.append(I("ds_read_b128 %s, v%d offset:%d" % (rname(fr, 4), a, sb + (i // 4) * 1024),
                         "ds", rd=V(a), wr=range(fr, fr + 4)))
        else:
            for ii in range(2):
                if kind == 'W':
                    jj, t = i // 6, i % 6
                    a = AQ + grp * 2 + (t % 2)
                    off = sb + jj * 6144 + ii * 512 + (t // 2) * 1024
                elif kind == 'V':
                    jj, t = i // 6, i % 6
                    a = AT + grp * 2 + (t % 2)
                    off = sb + (2 * jj + ii) * 3072 + (t // 2) * 1024
                else:
                    j, t = i // 2, i % 2
                    a = AT + grp * 2 + t
                    off = sb + (2 * j + ii) * 1024
                out.append(I("ds_read_b64_tr_b16 %s, v%d offset:%d" % (rname(fr + 2 * ii, 2), a, off),
                             "ds", rd=V(a), wr=range(fr + 2 * ii, fr + 2 * ii + 2)))
        for _ in out:
            self.lg.issue(('f', kabs))
        return out

    def tset(self, np_):
        return (TB, TB + 16) if np_ % 2 == 0 else (S[0], S[1])

    def mfma(self, k):
        u, i = k // 12, k % 12
        kind, idx = unit_kind(u)
        fr = AF + 4 * (k % self.NF)
        if kind == 'W':
            jj, t = i // 6, i % 6
            ks = 2 * idx + jj
            d = ACC + 16 * t
            return mfma32(d, fr, XPOOL[ks % len(XPOOL)], None if ks == 0 else d)
        if kind == 'K':
            d = S[idx % 2]
            c = d
            if i == 0:
                c = None if idx < 2 else NEGM
            return mfma32(d, fr, QB + 4 * i, c)
        if kind == 'V':
            jj, t = i // 6, i % 6
            d = ACC + 16 * t
            return mfma32(d, fr, P + 4 * jj, None if (idx == 0 and jj == 0) else d)
        np_, hf = idx // 2, idx % 2
        j, t = 6 * hf + i // 2, i % 2
        d = self.tset(np_)[t]
        return mfma32(d, fr, OB + 4 * j, d)

    def conv_tasks(self, src_last, dl0, dlstep, mul, dst):
        items = []
        for t in range(6):
            rdy = src_last(t) + 2
            for jj in range(2):
                dl = dl0 + dlstep * (2 * t + jj)
                for i in range(4):
                    r = ACC + 16 * t + 8 * jj + 2 * i
                    for q in (r, r + 1):
                        if mul[0] == 's':
                            items.append((valu("v_mul_f32 v%d, %s, v%d" % (q, mul, q), V(q), V(q)), rdy, dl))
                        else:
                            items.append((valu("v_mul_f32 v%d, %s, v%d" % (q, mul, q), V(q), V(q) + [int(mul[1:])]), rdy, dl))
                for i in range(4):
                    r = ACC + 16 * t + 8 * jj + 2 * i
                    items.append((valu("v_cvt_pk_bf16_f32 v%d, v%d, v%d" % (r, r, r + 1), V(r), V(r, 2), cost=1.15), rdy, dl))
                for i in range(4):
                    r = ACC + 16 * t + 8 * jj + 2 * i
                    d = dst + 8 * t + 4 * jj + i
                    items.append((valu("v_accvgpr_write_b32 %s, v%d" % (rname(d), r), [d], V(r), cost=1.15), rdy, dl))
        return items

    def max_tree(self, s, rdy, dl):
        it = [(valu("v_max3_f32 v%d, v%d, v%d, v%d" % (VMX, s, s + 1, s + 2), V(VMX), V(s, 3), cost=1.15), rdy, dl)]
        for r in range(3, 15, 2):
            it.append((valu("v_max3_f32 v%d, v%d, v%d, v%d" % (VMX, VMX, s + r, s + r + 1), V(VMX), V(VMX) + V(s + r, 2), cost=1.15), rdy, dl))
        it.append((valu("v_max_f32 v%d, v%d, v%d" % (VMX, VMX, s + 15), V(VMX), V(VMX) + V(s + 15)), rdy, dl))
        return it

    def exp_half(self, s, jj, rdy, dl):
        it = []
        for i in range(4):
            r = s + 8 * jj + 2 * i
            it.append((trans("v_exp_f32 v%d, v%d" % (r, r), V(r), V(r)), rdy, dl))
            it.append((trans("v_exp_f32 v%d, v%d" % (r + 1, r + 1), V(r + 1), V(r + 1)), rdy, dl))
            it.append((valu("v_add_f32 v%d, v%d, v%d" % (VL, VL, r), V(VL), V(VL) + V(r)), rdy, dl))
            p = P + 4 * jj + i
            it.append((valu("v_cvt_pk_bf16_f32 v%d, v%d, v%d" % (p, r, r + 1), V(p), V(r, 2), cost=1.15), rdy, dl))
            it.append((valu("v_add_f32 v%d, v%d, v%d" % (VL, VL, r + 1), V(VL), V(VL) + V(r + 1)), rdy, dl))
        return it

    def swap_reduce(self, reg, op, rdy, dl):
        return [
            (valu("v_mov_b32 v%d, v%d" % (VT, reg), V(VT), V(reg)), rdy, dl),
            (I("v_permlane32_swap_b32 v%d, v%d" % (reg, VT), "perm", rd=[reg, VT], wr=[reg, VT]), rdy, dl),
            (valu("%s v%d, v%d, v%d" % (op, reg, reg, VT), V(reg), [reg, VT]), rdy, dl),
        ]

    def rare_block(self, label, back, s):
        R = []
        R.append(I(label + ":", "label"))
        R.append(nop(16))
        R.append(valu("v_mov_b32 v%d, v%d" % (VT, VMX), V(VT), V(VMX)))
        R.append(I("v_permlane32_swap_b32 v%d, v%d" % (VMX, VT), "perm", rd=[VMX, VT], wr=[VMX, VT]))
        R.append(valu("v_max3_f32 v%d, v%d, v%d, 0" % (VMX, VMX, VT), V(VMX), [VMX, VT]))
        R.append(valu("v_sub_f32 v%d, 0, v%d" % (VT, VMX), V(VT), V(VMX)))
        R.append(trans("v_exp_f32 v%d, v%d" % (VT, VT), V(VT), V(VT)))
        for r in range(16):
            R.append(valu("v_sub_f32 v%d, v%d, v%d" % (s + r, s + r, VMX), V(s + r), [s + r, VMX]))
        for r in range(16):
            R.append(valu("v_sub_f32 v%d, v%d, v%d" % (NEGM + r, NEGM + r, VMX), V(NEGM + r), [NEGM + r, VMX]))
        R.append(valu("v_mul_f32 v%d, v%d, v%d" % (VL, VL, VT), V(VL), [VL, VT]))
        for r in range(96):
            R.append(valu("v_mul_f32 v%d, v%d, v%d" % (ACC + r, ACC + r, VT), V(ACC + r), [ACC + r, VT]))
        R.append(nop(4))
        R.append(I("s_branch %s" % back, "branch"))
        R, _ = fix_hazards(R)
        return R

    def build_streams(self):
        uK = lambda j: unit_of('K', j) * 12
        uV = lambda j: unit_of('V', j) * 12
        O0 = 52 * 12
        conv = self.conv_tasks(lambda t: 19 * 12 + 6 + t, 240, 1, "s%d" % S_SCALE, QB)
        sm = []
        r0 = uK(0) + 11 + 2
        d0 = uV(0)
        sm += self.max_tree(S[0], r0, d0)
        sm += self.swap_reduce(VMX, "v_max_f32", r0, d0)
        sm.append((valu("v_sub_f32 v%d, 0, v%d" % (NEGM, VMX), V(NEGM), V(VMX)), r0, d0))
        sm.append((valu("v_mov_b32 v%d, 0" % VL, V(VL), []), r0, d0))
        for r in range(8):
            sm.append((valu("v_add_f32 v%d, v%d, v%d" % (S[0] + r, S[0] + r, NEGM), V(S[0] + r), [S[0] + r, NEGM]), r0, d0))
        sm += self.exp_half(S[0], 0, r0, d0)
        for r in range(8, 16):
            sm.append((valu("v_add_f32 v%d, v%d, v%d" % (S[0] + r, S[0] + r, NEGM), V(S[0] + r), [S[0] + r, NEGM]), r0, d0 + 6))
        sm += self.exp_half(S[0], 1, r0, d0 + 6)
        for r in range(1, 16):
            sm.append((valu("v_mov_b32 v%d, v%d" % (NEGM + r, NEGM), V(NEGM + r), V(NEGM)), r0, d0 + 12))
        for j in range(1, 16):
            s = S[j % 2]
            rj = uK(j) + 11 + 2
            chk = uV(j - 1) + 11
            if j == 1:
                for r in range(16):
                    sm.append((valu("v_add_f32 v%d, v%d, v%d" % (s + r, s + r, NEGM), V(s + r), [s + r, NEGM]), rj, chk + 1))
            sm += self.max_tree(s, rj, chk + 1)
            sm.append((valu("v_cmp_lt_f32 vcc, s%d, v%d" % (S_THR, VMX), [], V(VMX), swr=("vcc",)), rj, chk + 1))
            lab, back = "L_rare_%d" % j, "L_back_%d" % j
            sm.append((I("s_cbranch_vccnz %s\n%s:" % (lab, back), "branch", srd=("vcc",)), chk, chk + 1))
            self.rare_blocks[j] = (lab, back, s)
            sm += self.exp_half(s, 0, chk, uV(j))
            sm += self.exp_half(s, 1, chk, uV(j) + 6)
        rl = uV(15) + 6
        sm += self.swap_reduce(VL, "v_add_f32", rl, O0)
        sm.append((trans("v_rcp_f32 v%d, v%d" % (VR, VL), V(VR), V(VL)), rl, O0))
        sm += self.conv_tasks(lambda t: uV(15) + 6 + t, O0, 2, "v%d" % VR, OB)
        pk = []
        def unpack(np_, rdy):
            dl = O0 + 24 * np_
            for t in range(2):
                T = self.tset(np_)[t]
                for i in range(8):
                    a = OUTP + (2 * np_ + t) * 8 + i
                    lo, hi = T + 2 * i, T + 2 * i + 1
                    pk.append((valu("v_accvgpr_read_b32 v%d, %s" % (hi, rname(a)), V(hi), [a], cost=1.15), rdy, dl))
                    pk.append((valu("v_lshlrev_b32 v%d, 16, v%d" % (lo, hi), V(lo), V(hi)), rdy, dl))
                    pk.append((valu("v_and_b32 v%d, s%d, v%d" % (hi, S_MASK, hi), V(hi), V(hi)), rdy, dl))
        def pack(np_):
            rdy = O0 + 24 * np_ + 23 + 2
            dl = min(O0 + 24 * (np_ + 2), NM)
            for t in range(2):
                T = self.tset(np_)[t]
                for i in range(8):
                    a = OUTP + (2 * np_ + t) * 8 + i
                    lo, hi = T + 2 * i, T + 2 * i + 1
                    pk.append((valu("v_cvt_pk_bf16_f32 v%d, v%d, v%d" % (lo, lo, hi), V(lo), V(lo, 2), cost=1.15), rdy, dl))
                    pk.append((valu("v_accvgpr_write_b32 %s, v%d" % (rname(a), lo), [a], V(lo), cost=1.15), rdy, dl))
        unpack(0, uK(3))
        unpack(1, uV(15) + 8)
        for np_ in range(10):
            pack(np_)
            if np_ + 2 < 10:
                unpack(np_ + 2, 0)
        return [conv, sm, pk]

    def body(self, it, limit=None):
        PF = self.PF
        self.rare_blocks = {}
        streams = [list(s) for s in self.build_streams()]
        pos = [0] * len(streams)
        out = []
        base = it * NM
        pend_dma = []
        xs = {}
        for i in range(40):
            use = (i // 2) * 12 + (i % 2) * 6
            g = use - self.xlead * 12 + 3
            prev = i - len(XPOOL)
            if prev >= 0:
                g = max(g, (prev // 2) * 12 + (prev % 2) * 6 + 6)
            hit = it
            if g < 0:
                g += NM
                hit = it + 1
            xs.setdefault(g, []).append((hit, i))
        self.next_ops = []

        def flush(deadline):
            for si, st in enumerate(streams):
                last = -1
                for q in range(pos[si], len(st)):
                    if st[q][2] <= deadline:
                        last = q
                while pos[si] <= last:
                    out.append(st[pos[si]][0])
                    pos[si] += 1

        nm = NM if limit is None else limit
        for k in range(nm):
            flush(k)
            out.append(self.mfma(k))
            used = 0.0
            waits = []
            n = self.lg.need({('f', base + k + 1)})
            lgw = n
            vmw = None
            k1 = (k + 1) % NM
            kind1, idx1 = unit_kind(k1 // 12)
            if kind1 == 'W' and (k1 % 6) == 0:
                ks = 2 * idx1 + (k1 % 12) // 6
                vmw = self.vm.need({('x', it + (1 if k + 1 >= NM else 0), ks)})
            isbar = ((k + PF) % 12) == 0
            if isbar:
                unext = (base + k + PF) // 12
                n2 = self.vm.need({('u', unext)})
                if n2 is not None:
                    vmw = n2 if vmw is None else min(vmw, n2)
            w = []
            if vmw is not None:
                w.append("vmcnt(%d)" % vmw)
            if lgw is not None:
                w.append("lgkmcnt(%d)" % lgw)
            if w:
                out.append(I("s_waitcnt " + " ".join(w), "wait"))
            if isbar:
                out.append(I("s_barrier", "bar"))
                used += 1
                unext = (base + k + PF) // 12
                for p in range(3):
                    pend_dma.append((unext + NSLOT - 2, p))
            rds = self.frag_reads(base + k + PF)
            out += rds
            used += len(rds)
            if pend_dma and not isbar:
                uabs, p = pend_dma.pop(0)
                if uabs >= (it + 1) * NUNIT:
                    self.next_ops.append(('u', uabs - (it + 1) * NUNIT, p))
                ins = self.dma(uabs, p)
                out += ins
                used += len(ins)
            for (hit, i) in xs.get(k, []):
                if hit > it:
                    self.next_ops.append(('x', i))
                ins = self.xload(hit, i)
                out += ins
                used += len(ins)
            while True:
                best = None
                for si, st in enumerate(streams):
                    if pos[si] < len(st):
                        ins, rdy, dl = st[pos[si]]
                        if rdy <= k and (best is None or dl < best[1]):
                            best = (si, dl, ins)
                if best is None:
                    break
                if used + best[2].cost > self.budget + 1e-6:
                    break
                out.append(best[2])
                used += best[2].cost
                pos[best[0]] += 1
        if limit is None:
            flush(10 ** 9)
            assert not pend_dma
        else:
            flush(limit)
        return out

    def prologue(self):
        L = []
        e = lambda t: L.append(I(t, "raw"))
        e("s_cmp_ge_u32 s2, 256")
        e("s_cbranch_scc1 L_end")
        if self.stamps:
            e("s_memtime s[92:93]\ns_memrealtime s[94:95]")
        e("s_load_dwordx16 s[64:79], s[0:1], 0")
        e("s_load_dwordx4 s[80:83], s[0:1], 64")
        e("s_load_dwordx2 s[84:85], s[0:1], 96")
        e("s_and_b32 s48, s2, 7")
        e("s_lshr_b32 s49, s2, 3")
        e("s_lshr_b32 s50, s48, 2")
        e("s_and_b32 s51, s48, 3")
        e("s_lshl_b32 s51, s51, 1")
        e("s_and_b32 s52, s49, 1")
        e("s_add_u32 s51, s51, s52")
        e("s_lshr_b32 s52, s49, 1")
        e("v_lshrrev_b32 v1, 6, v0")
        e("v_and_b32 v2, 63, v0")
        e("s_nop 0")
        e("v_readfirstlane_b32 s%d, v1" % S_WAVE)
        e("s_waitcnt lgkmcnt(0)")
        e("s_cmp_eq_u32 s50, 0")
        for (d, a, b, nrec) in ((SRD_X, 64, 74, 2621440), (SRD_K, 66, 76, 100663296), (SRD_V, 68, 78, 100663296),
                                (SRD_WQ, 70, 80, 7864320), (SRD_WO, 72, 82, 7864320)):
            e("s_cselect_b32 s%d, s%d, s%d" % (d, a, b))
            e("s_cselect_b32 s%d, s%d, s%d" % (d + 1, a + 1, b + 1))
            e("s_mov_b32 s%d, %d" % (d + 2, nrec))
            e("s_mov_b32 s%d, 0x00020000" % (d + 3))
        e("s_mov_b32 s%d, s84" % SRD_WS)
        e("s_mov_b32 s%d, s85" % (SRD_WS + 1))
        e("s_mov_b32 s%d, %d" % (SRD_WS + 2, 256 * 163840 + (65536 if self.stamps else 0)))
        e("s_mov_b32 s%d, 0x00020000" % (SRD_WS + 3))
        e("s_lshl_b32 s53, s52, 5")
        e("s_lshl_b32 s54, s51, 2")
        e("s_add_u32 s53, s53, s54")
        e("s_mul_i32 s%d, s53, 196608" % S_K)
        e("s_mov_b32 s%d, s%d" % (S_V, S_K))
        e("s_mul_i32 s%d, s54, 384" % S_WQB)
        e("s_sub_u32 s%d, s%d, 384" % (S_WQB, S_WQB))
        e("s_mul_i32 s%d, s54, 245760" % S_WOB)
        e("s_mul_i32 s%d, s52, 163840" % S_XB)
        e("s_mov_b32 s%d, -1" % S_LOOP)
        e("s_mul_i32 s%d, s%d, 3072" % (S_LDSW, S_WAVE))
        e("s_mov_b32 s%d, 0x%x" % (S_THR, f32bits(self.thr)))
        e("s_mov_b32 s%d, 0x%x" % (S_SCALE, f32bits(192 ** -0.5 * math.log2(math.e))))
        e("s_mov_b32 s%d, 0xffff0000" % S_MASK)
        e("s_lshl_b32 s55, s50, 4")
        e("s_add_u32 s55, s55, s52")
        e("s_lshl_b32 s55, s55, 3")
        e("s_add_u32 s55, s55, s51")
        e("s_mul_i32 s%d, s55, 163840" % S_PST)
        e("s_mul_i32 s56, s%d, 40960" % S_WAVE)
        e("s_add_u32 s%d, s%d, s56" % (S_PST, S_PST))
        e("v_lshrrev_b32 v96, 3, v2")
        e("v_and_b32 v97, 7, v2")
        e("v_lshl_add_u32 v98, v1, 3, v96")
        e("v_lshrrev_b32 v99, 1, v98")
        e("v_and_b32 v99, 7, v99")
        e("v_xor_b32 v99, v99, v97")
        e("v_lshlrev_b32 v99, 4, v99")
        e("v_mul_u32_u24 v100, 384, v98")
        e("v_add_u32 v%d, v100, v99" % VOFF_K)
        e("v_lshrrev_b32 v101, 1, v96")
        e("v_and_b32 v101, 1, v101")
        e("v_lshlrev_b32 v101, 2, v101")
        e("v_xor_b32 v101, v101, v97")
        e("v_lshlrev_b32 v101, 4, v101")
        e("v_add_u32 v%d, v100, v101" % VOFF_V)
        e("v_mul_u32_u24 v102, 12288, v98")
        e("v_add_u32 v%d, v102, v101" % VOFF_WQ)
        e("v_mul_u32_u24 v102, 24, v1")
        e("v_add_u32 v102, v102, v96")
        e("v_mul_u32_u24 v102, 1280, v102")
        e("v_add_u32 v%d, v102, v101" % VOFF_WO)
        e("v_and_b32 v103, 31, v2")
        e("v_lshrrev_b32 v104, 5, v2")
        e("v_lshl_add_u32 v105, v1, 5, v103")
        e("v_mul_u32_u24 v105, 1280, v105")
        e("v_lshl_add_u32 v%d, v104, 4, v105" % VOFF_X)
        e("v_lshlrev_b32 v%d, 4, v2" % VOFF_P)
        e("v_lshrrev_b32 v106, 3, v103")
        e("v_mul_u32_u24 v106, 3072, v106")
        e("v_and_b32 v107, 7, v103")
        e("v_lshl_add_u32 v106, v107, 7, v106")
        e("v_lshrrev_b32 v107, 1, v103")
        e("v_and_b32 v107, 7, v107")
        e("v_xor_b32 v107, v107, v104")
        e("v_lshlrev_b32 v107, 4, v107")
        for jm in range(4):
            e("v_xor_b32 v108, %d, v107" % (jm * 32))
            e("v_add_u32 v%d, v106, v108" % (AK + jm))
            e("v_add_u32 v%d, %d, v%d" % (AK + 4 + jm, 4 * UNIT, AK + jm))
            e("v_add_u32 v%d, %d, v%d" % (AK + 8 + jm, 8 * UNIT, AK + jm))
        e("v_lshrrev_b32 v109, 4, v2")
        e("v_and_b32 v109, 1, v109")
        e("v_bfe_u32 v110, v2, 2, 2")
        e("v_and_b32 v111, 3, v2")
        e("v_lshrrev_b32 v112, 1, v110")
        e("v_lshlrev_b32 v112, 2, v112")
        e("v_lshl_add_u32 v113, v104, 2, v110")
        e("v_lshlrev_b32 v113, 7, v113")
        e("v_lshrrev_b32 v114, 1, v111")
        e("v_lshl_add_u32 v114, v109, 1, v114")
        e("v_xor_b32 v114, v114, v112")
        e("v_lshlrev_b32 v114, 4, v114")
        e("v_and_b32 v115, 1, v111")
        e("v_lshl_add_u32 v114, v115, 3, v114")
        e("v_add_u32 v113, v113, v114")
        for par in range(2):
            e("v_xor_b32 v%d, %d, v113" % (AT + par, 64 * par))
            e("v_add_u32 v%d, %d, v%d" % (AT + 2 + par, 4 * UNIT, AT + par))
            e("v_add_u32 v%d, %d, v%d" % (AT + 4 + par, 8 * UNIT, AT + par))
        e("v_mul_u32_u24 v113, 3072, v104")
        e("v_lshl_add_u32 v113, v110, 7, v113")
        e("v_lshl_add_u32 v114, v109, 1, v115")
        e("v_xor_b32 v114, v114, v112")
        e("v_lshlrev_b32 v114, 4, v114")
        e("v_lshrrev_b32 v115, 1, v111")
        e("v_lshl_add_u32 v114, v115, 3, v114")
        e("v_add_u32 v113, v113, v114")
        for par in range(2):
            e("v_xor_b32 v%d, %d, v113" % (AQ + par, 64 * par))
            e("v_add_u32 v%d, %d, v%d" % (AQ + 2 + par, 4 * UNIT, AQ + par))
            e("v_add_u32 v%d, %d, v%d" % (AQ + 4 + par, 8 * UNIT, AQ + par))
        e("s_nop 4")
        return L

    def store_regs(self, regs_base, nquads):
        L = []
        for q in range(nquads):
            if q % 4 == 0 and q:
                L.append(salu("s_add_u32 s%d, s%d, 4096" % (S_PST, S_PST)))
            r = regs_base + 4 * q
            L.append(I("buffer_store_dwordx4 %s, v%d, %s, s%d offen offset:%d" % (rname(r, 4), VOFF_P, srd(SRD_WS), S_PST, (q % 4) * 1024),
                       "store", rd=list(range(r, r + 4)) + [VOFF_P], tag="wide"))
        return L

    def main_kernel(self):
        limit = None
        if self.dbg == 'Q':
            limit = 252
        elif self.dbg == 'O':
            limit = 52 * 12 + 24
        self.vm = Counter(63); self.lg = Counter(15)
        self.body(0)
        nxt = list(self.next_ops)
        self.vm = Counter(63); self.lg = Counter(15)
        pro = self.prologue()
        pre = []
        for op in nxt:
            if op[0] == 'u':
                pre += self.dma(op[1], op[2])
            else:
                pre += self.xload(0, op[1])
        for r in range(160):
            pre.append(valu("v_accvgpr_write_b32 %s, 0" % rname(OUTP + r), [OUTP + r], []))
        n = self.vm.need({('u', 0)})
        pre.append(I("s_waitcnt vmcnt(%d)" % n, "wait"))
        pre.append(I("s_barrier", "bar"))
        for k in range(self.PF):
            pre += self.frag_reads(k)
        w = []
        n = self.vm.need({('x', 0, 0)})
        if n is not None:
            w.append("vmcnt(%d)" % n)
        n = self.lg.need({('f', 0)})
        w.append("lgkmcnt(%d)" % n)
        pre.append(I("s_waitcnt " + " ".join(w), "wait"))
        pre.append(salu("s_mov_b32 s%d, 0" % S_LOOP))
        b0 = self.body(0, limit)
        if limit is None:
            b1 = self.body(1)
            t0 = [i.text for i in b0]; t1 = [i.text for i in b1]
            if t0 != t1:
                for a, b in zip(t0, t1):
                    if a != b:
                        print("MISMATCH", a, "|", b)
                        break
                raise SystemExit("loop body not steady")
        pre, _ = fix_hazards(pre)
        loop_tail = [salu("s_add_u32 s%d, s%d, 1" % (S_LOOP, S_LOOP)),
                     salu("s_cmp_lt_u32 s%d, %d" % (S_LOOP, self.nheads)),
                     I("s_cbranch_scc1 L_loop", "branch")]
        bodyA, nA = fix_hazards(b0 + loop_tail, prefix=pre)
        bodyB, nB = fix_hazards(bodyA, prefix=bodyA)
        self.nops_inserted = nA + nB
        body = bodyB
        if limit is not None:
            body = body[:-3]
        epi = [nop(16)]
        if self.dbg == 'Q' or self.dbg == 'O':
            epi += self.store_regs(QB, 12)
        else:
            epi += self.store_regs(OUTP, 40)
        epi.append(I("s_waitcnt vmcnt(0) lgkmcnt(0)", "wait"))
        if self.stamps:
            st = """s_memtime s[96:97]
s_memrealtime s[98:99]
s_waitcnt lgkmcnt(0)
v_mov_b32 v64, s92
v_mov_b32 v65, s93
v_mov_b32 v66, s94
v_mov_b32 v67, s95
v_mov_b32 v68, s96
v_mov_b32 v69, s97
v_mov_b32 v70, s98
v_mov_b32 v71, s99
s_lshl_b32 s48, s2, 7
s_lshl_b32 s49, s%d, 5
s_add_u32 s48, s48, s49
s_add_u32 s48, s48, %d
v_mov_b32 v72, s48
buffer_store_dwordx4 v[64:67], v72, %s, 0 offen
buffer_store_dwordx4 v[68:71], v72, %s, 0 offen offset:16
s_waitcnt vmcnt(0)""" % (S_WAVE, 256 * 163840, srd(SRD_WS), srd(SRD_WS))
            epi.append(I(st, "raw"))
        epi, _ = fix_hazards(epi)
        rare = []
        for j, (lab, back, s) in sorted(self.rare_blocks.items()):
            if any(lab in i.text for i in body):
                rare += self.rare_block(lab, back, s)
        T = []
        T.append(".globl attn_kernel\n.p2align 8\n.type attn_kernel,@function\nattn_kernel:")
        T += [i.text for i in pro]
        T += [i.text for i in pre]
        T.append(".p2align 6\nL_loop:")
        T += [i.text for i in body]
        T += [i.text for i in epi]
        T.append("L_end:\ns_endpgm")
        T += [i.text for i in rare]
        self.body_ins = body
        return "\n".join(T) + "\n"

    def reduce_kernel(self):
        T = []
        e = T.append
        e(".globl reduce_kernel\n.p2align 8\n.type reduce_kernel,@function\nreduce_kernel:")
        e("s_cmp_ge_u32 s2, 640")
        e("s_cbranch_scc1 R_end")
        e("s_load_dwordx2 s[4:5], s[0:1], 96")
        e("s_load_dwordx2 s[6:7], s[0:1], 80")
        e("s_mul_hi_u32 s16, s2, 0x%x" % ((1 << 32) // 20 + 1))
        e("s_mul_i32 s17, s16, 20")
        e("s_sub_u32 s17, s2, s17")
        e("v_lshrrev_b32 v1, 6, v0")
        e("v_and_b32 v2, 63, v0")
        e("v_mul_u32_u24 v3, 40960, v1")
        e("v_lshl_add_u32 v3, v2, 4, v3")
        e("s_mul_i32 s18, s16, %d" % (8 * 163840))
        e("s_lshl_b32 s19, s17, 11")
        e("s_add_u32 s18, s18, s19")
        e("s_waitcnt lgkmcnt(0)")
        e("s_mov_b32 s8, s4\ns_mov_b32 s9, s5\ns_mov_b32 s10, %d\ns_mov_b32 s11, 0x00020000" % (256 * 163840))
        e("s_mov_b32 s12, s6\ns_mov_b32 s13, s7\ns_mov_b32 s14, %d\ns_mov_b32 s15, 0x00020000" % (16 * 128 * 1280 * 2))
        e("s_mov_b32 s20, 0xffff0000")
        for g in range(8):
            e("buffer_load_dwordx4 v[%d:%d], v3, s[8:11], s18 offen" % (16 + 8 * g, 19 + 8 * g))
            e("buffer_load_dwordx4 v[%d:%d], v3, s[8:11], s18 offen offset:1024" % (20 + 8 * g, 23 + 8 * g))
            if g < 7:
                e("s_add_u32 s18, s18, 163840")
        e("s_and_b32 s21, s16, 15")
        e("s_lshr_b32 s22, s16, 4")
        e("v_and_b32 v4, 31, v2")
        e("v_lshl_add_u32 v4, v1, 5, v4")
        e("v_mul_u32_u24 v4, 2560, v4")
        e("v_lshrrev_b32 v5, 5, v2")
        e("v_lshl_add_u32 v4, v5, 5, v4")
        e("s_mul_i32 s23, s21, %d" % (128 * 2560))
        e("s_mul_i32 s24, s22, 1280")
        e("s_add_u32 s23, s23, s24")
        e("s_lshl_b32 s24, s17, 6")
        e("s_add_u32 s23, s23, s24")
        for g in range(8):
            e("s_waitcnt vmcnt(%d)" % (14 - 2 * g))
            for i in range(8):
                r = 16 + 8 * g + i
                if g == 0:
                    e("v_lshlrev_b32 v%d, 16, v%d" % (96 + 2 * i, r))
                    e("v_and_b32 v%d, s20, v%d" % (97 + 2 * i, r))
                else:
                    e("v_lshlrev_b32 v6, 16, v%d" % r)
                    e("v_and_b32 v7, s20, v%d" % r)
                    e("v_add_f32 v%d, v%d, v6" % (96 + 2 * i, 96 + 2 * i))
                    e("v_add_f32 v%d, v%d, v7" % (97 + 2 * i, 97 + 2 * i))
        for i in range(8):
            e("v_cvt_pk_bf16_f32 v%d, v%d, v%d" % (112 + i, 96 + 2 * i, 97 + 2 * i))
        e("s_nop 1")
        e("v_permlane32_swap_b32 v112, v116")
        e("v_permlane32_swap_b32 v113, v117")
        e("v_permlane32_swap_b32 v114, v118")
        e("v_permlane32_swap_b32 v115, v119")
        e("s_nop 1")
        e("v_mov_b32 v120, v112\nv_mov_b32 v121, v113\nv_mov_b32 v122, v116\nv_mov_b32 v123, v117")
        e("v_mov_b32 v124, v114\nv_mov_b32 v125, v115\nv_mov_b32 v126, v118\nv_mov_b32 v127, v119")
        e("buffer_store_dwordx4 v[120:123], v4, s[12:15], s23 offen")
        e("buffer_store_dwordx4 v[124:127], v4, s[12:15], s23 offen offset:16")
        e("s_waitcnt vmcnt(0)")
        e("R_end:\ns_endpgm")
        return "\n".join(T) + "\n"

    def full(self):
        s = HEADER
        s += "; @launch kernel=attn_kernel grid=(256,1,1) block=(256,1,1) lds=%d\n" % (NSLOT * UNIT)
        s += "; @launch kernel=reduce_kernel grid=(640,1,1) block=(256,1,1) lds=0\n"
        s += '.amdgcn_target "amdgcn-amd-amdhsa--gfx950"\n.text\n'
        s += self.main_kernel()
        s += self.reduce_kernel()
        s += '.section .rodata,"a"\n'
        for name, nv, ao in (("attn_kernel", 512, 256), ("reduce_kernel", 128, 128)):
            s += """.p2align 6
.amdhsa_kernel %s
  .amdhsa_next_free_vgpr %d
  .amdhsa_next_free_sgpr 102
  .amdhsa_accum_offset %d
  .amdhsa_group_segment_fixed_size 0
  .amdhsa_kernarg_size 104
  .amdhsa_user_sgpr_count 2
  .amdhsa_user_sgpr_kernarg_segment_ptr 1
  .amdhsa_system_sgpr_workgroup_id_x 1
  .amdhsa_float_denorm_mode_32 3
.end_amdhsa_kernel
""" % (name, nv, ao)
        return s


if __name__ == "__main__":
    kw = eval("dict(%s)" % (sys.argv[2] if len(sys.argv) > 2 else ""))
    g = Gen(**kw)
    txt = g.full()
    open(sys.argv[1] if len(sys.argv) > 1 else "out.s", "w").write(txt)
    print("nops inserted:", g.nops_inserted, "body instrs:", len(g.body_ins), "bytes of text:", len(txt))
```
